```python
import torch

def _softmax(x, axis=-1):
    return torch.softmax(x, dim=axis)
def _gelu(x):
    return torch.nn.functional.gelu(x, approximate="tanh")
def _silu(x):
    return torch.nn.functional.silu(x)
def _sigmoid(x):
    return torch.sigmoid(x)
def _layernorm(x, axis=-1, eps=1e-5):
    m = x.mean(dim=axis, keepdim=True)
    v = x.var(dim=axis, keepdim=True, unbiased=False)
    return (x - m) / torch.sqrt(v + eps)
def _scatter_add(tgt, idx, src, axis=0):
    return tgt.clone().index_add_(axis, idx, src)
def _segment_sum(src, seg, n):
    out = torch.zeros((n,) + src.shape[1:], dtype=src.dtype)
    return out.index_add_(0, seg, src)
def _pad(x, pw):
    flat = tuple(v for pair in reversed(pw) for v in pair)
    return torch.nn.functional.pad(x, flat)

kernel_name = 'standalone__glu_gated_geglu__prompt'

def setup_inputs():

    _w = (lambda a: (lambda t: t.to(torch.bfloat16) if t.is_floating_point() else t)(torch.as_tensor(a)))
    B, S, Dm, Df = 1, 2048, 576, 4608
    return {
        "x": _w((lambda *s: torch.randn(*s, dtype=torch.bfloat16) * 0.05)(B, S, Dm)),
        "w_gate": _w((lambda *s: torch.randn(*s, dtype=torch.bfloat16) * 0.05)(Dm, Df) * (Dm ** -0.5)),
        "w_up": _w((lambda *s: torch.randn(*s, dtype=torch.bfloat16) * 0.05)(Dm, Df) * (Dm ** -0.5)),
        "w_down": _w((lambda *s: torch.randn(*s, dtype=torch.bfloat16) * 0.05)(Df, Dm) * (Df ** -0.5)),
    }

def reference(x, w_gate, w_up, w_down):
    g = torch.einsum("bsd,df->bsf", x, w_gate)
    u = torch.einsum("bsd,df->bsf", x, w_up)
    h = _gelu(g) * u
    return torch.einsum("bsf,fd->bsd", h, w_down)
```

```python
KN = 'standalone__glu_gated_geglu__prompt'

HEADER = """; Kernarg layout for this problem (56 bytes, ptrs only, base s[0:1]):
"""

class Asm:
    def __init__(self):
        self.lines = []
        self.uid = 0
    def __call__(self, txt):
        for t in txt.split('\n'):
            t = t.strip()
            if t:
                self.lines.append('  ' + t)
    def label(self, name):
        self.lines.append(name + ':')
    def newlabel(self, base='L'):
        self.uid += 1
        return f'{base}_{self.uid}'
    def comment(self, txt):
        self.lines.append('  ; ' + txt)
    def text(self):
        return '\n'.join(self.lines) + '\n'

def kernel_text(name, body, vgpr, accum, sgpr=102):
    t = f""".text
.globl {name}
.p2align 8
.type {name},@function
{name}:
{body}"""
    d = f""".section .rodata,"a"
.p2align 6
.amdhsa_kernel {name}
  .amdhsa_next_free_vgpr {vgpr}
  .amdhsa_next_free_sgpr {sgpr}
  .amdhsa_accum_offset {accum}
  .amdhsa_group_segment_fixed_size 0
  .amdhsa_kernarg_size 56
  .amdhsa_user_sgpr_count 2
  .amdhsa_user_sgpr_kernarg_segment_ptr 1
  .amdhsa_system_sgpr_workgroup_id_x 1
  .amdhsa_float_denorm_mode_32 3
.end_amdhsa_kernel
"""
    return t, d

def single_file(body, grid, block, lds, vgpr, accum, sgpr=102):
    name = KN + '_kernel'
    t, d = kernel_text(name, body, vgpr, accum, sgpr)
    return (HEADER + f'; @launch grid=({grid},1,1) block=({block},1,1) lds={lds}\n'
            + '.amdgcn_target "amdgcn-amd-amdhsa--gfx950"\n' + t + d)

def multi_file(kernels):
    h = HEADER
    for (name, body, grid, block, lds, vgpr, accum, sgpr) in kernels:
        h += f'; @launch kernel={name} grid=({grid},1,1) block=({block},1,1) lds={lds}\n'
    h += '.amdgcn_target "amdgcn-amd-amdhsa--gfx950"\n'
    seen = set(); ts = ''; ds = ''
    for (name, body, grid, block, lds, vgpr, accum, sgpr) in kernels:
        if name in seen: continue
        seen.add(name)
        t, d = kernel_text(name, body, vgpr, accum, sgpr)
        ts += t; ds += d
    return h + ts + ds

def srd(a, dst, base, nbytes):
    a(f's_mov_b32 s{dst}, s{base}')
    a(f's_mov_b32 s{dst+1}, s{base+1}')
    a(f's_mov_b32 s{dst+2}, {nbytes}')
    a(f's_mov_b32 s{dst+3}, 0x00020000')
```

```python
import sys, math
from asmlib import *

C0 = -2.0 * 1.4426950408889634 * 0.7978845608028654
C1 = C0 * 0.044715
import struct
def fbits(x): return '0x%08x' % struct.unpack('<I', struct.pack('<f', x))[0]

H_OFF = 0
H_BYTES = 4 * 128 * 36 * 1024
P_OFF = 0x1400000
P_BYTES = 4 * 8 * 8 * 4 * 18 * 1024
ST_OFF = 0x3000000

def pi(r): return r ^ (((r >> 3) & 1) << 2)

def common_prologue(a):
    a('s_cmp_ge_u32 s2, 256')
    a('s_cbranch_scc1 L_end%s' % a.sfx)
    a('s_load_dwordx4 s[4:7], s[0:1], 0')
    a('s_load_dwordx4 s[8:11], s[0:1], 16')
    a('s_load_dwordx2 s[12:13], s[0:1], 32')
    a('s_load_dwordx2 s[14:15], s[0:1], 48')
    a('v_lshrrev_b32 v1, 6, v0')
    a('v_and_b32 v0, 63, v0')
    a('s_and_b32 s40, s2, 7')
    a('v_readfirstlane_b32 s28, v1')
    a('s_lshr_b32 s41, s2, 3')
    a('s_and_b32 s31, s41, 7')
    a('s_lshr_b32 s41, s41, 3')
    a('s_and_b32 s32, s40, 3')
    a('s_lshr_b32 s40, s40, 2')
    a('s_lshl_b32 s40, s40, 2')
    a('s_add_u32 s33, s40, s41')
    a('s_lshl_b32 s34, s32, 3')
    a('s_add_u32 s34, s34, s31')
    a('s_and_b32 s35, s31, 1')
    a('s_lshr_b32 s29, s28, 1')
    a('s_and_b32 s30, s28, 1')
    a('s_waitcnt lgkmcnt(0)')

class Stamper:
    def __init__(self, a, enable, vc=250, vr=251):
        self.a = a; self.n = 0; self.en = enable; self.vc = vc; self.vr = vr
    def __call__(self):
        if not self.en: return
        a = self.a
        a('s_memtime s[90:91]')
        a('s_memrealtime s[92:93]')
        a('s_waitcnt lgkmcnt(0)')
        a(f'v_writelane_b32 v{self.vc}, s90, {self.n}')
        a(f'v_writelane_b32 v{self.vr}, s92, {self.n}')
        self.n += 1
    def flush(self, off):
        if not self.en: return
        a = self.a
        srd(a, 84, 14, 1 << 28)
        a('s_lshl_b32 s94, s2, 10')
        a('s_lshl_b32 s95, s28, 8')
        a('s_add_u32 s94, s94, s95')
        a(f's_add_u32 s94, s94, {off}')
        a('v_lshlrev_b32 v2, 3, v0')
        a(f'v_mov_b32 v4, v{self.vc}')
        a(f'v_mov_b32 v5, v{self.vr}')
        a('v_cmp_gt_u32 vcc, 32, v0')
        a('s_and_saveexec_b64 s[96:97], vcc')
        a('buffer_store_dwordx2 v[4:5], v2, s[84:87], s94 offen')
        a('s_waitcnt vmcnt(0)')
        a('s_mov_b64 exec, s[96:97]')

def emit_stream(a, mf, fill):
    for x in fill.get(-1, []): a(x)
    for n, m in enumerate(mf):
        a(m)
        for x in fill.get(n, []): a(x)

def gen_k1(stamps=False):
    a = Asm(); a.sfx = '_k1'
    common_prologue(a)
    st = Stamper(a, stamps)
    st()
    srd(a, 16, 4, 2359296)
    a('s_cmp_eq_u32 s30, 1')
    a('s_cselect_b32 s20, s8, s6')
    a('s_cselect_b32 s21, s9, s7')
    a('s_mov_b32 s22, 5308416')
    a('s_mov_b32 s23, 0x00020000')
    srd(a, 24, 14, 1 << 28)
    VW = 1
    VXO = 10
    VA1, VA2 = 18, 19
    VAC = 20
    VX0, VX1 = 24, 25
    VH = 26
    VT = 27
    VC0, VC1, VONE = 28, 30, 32
    T0 = 34
    ACCV = 56
    AX = 96; AA = 160
    a('s_lshl_b32 s42, s35, 1')
    for t in range(9):
        r = VW + t
        a(f'v_add_u32 v{VT}, {64*t}, v0')
        a(f'v_mul_u32_u24 v50, 3641, v{VT}')
        a('v_lshrrev_b32 v50, 16, v50')
        a(f'v_mul_u32_u24 v51, 18, v50')
        a(f'v_sub_u32 v51, v{VT}, v51')
        a('v_add_u32 v51, s42, v51')
        a('v_subrev_u32 v52, 18, v51')
        a('v_cmp_gt_u32 vcc, 18, v51')
        a('s_nop 1')
        a('v_cndmask_b32 v51, v52, v51, vcc')
        a('v_lshrrev_b32 v52, 1, v50')
        a('v_and_b32 v52, 4, v52')
        a('v_xor_b32 v50, v50, v52')
        a('v_mul_u32_u24 v50, 9216, v50')
        a('v_lshlrev_b32 v51, 4, v51')
        a(f'v_add_u32 v{r}, v50, v51')
        if t & 3:
            a(f'v_subrev_u32 v{r}, {1024*(t&3)}, v{r}')
    for v in range(8):
        r = VXO + v
        a('v_lshrrev_b32 v50, 3, v0')
        a(f'v_add_u32 v50, {8*v}, v50')
        a('v_lshrrev_b32 v51, 1, v50')
        a('v_and_b32 v51, 7, v51')
        a('v_and_b32 v52, 7, v0')
        a('v_xor_b32 v51, v51, v52')
        a('v_mul_u32_u24 v50, 1152, v50')
        a('v_lshlrev_b32 v51, 4, v51')
        a(f'v_add_u32 v{r}, v50, v51')
        if v & 3:
            a(f'v_subrev_u32 v{r}, {1024*(v&3)}, v{r}')
    a('s_lshl_b32 s36, s33, 2')
    a('s_add_u32 s36, s36, s28')
    a('s_mul_i32 s36, s36, 73728')
    a('s_mul_i32 s37, s29, 294912')
    a('s_mul_i32 s42, s34, 288')
    a('s_add_u32 s37, s37, s42')
    a('s_lshl_b32 s38, s28, 13')
    a('s_mul_i32 s39, s30, 9216')
    a('s_add_u32 s39, s39, 65536')
    def x_dma(s):
        out = []
        out.append([f's_add_u32 s43, s36, {128*s}'])
        for v in range(8):
            g = []
            if (v & 3) == 0:
                g.append(f's_add_u32 m0, s38, {(s%2)*32768 + v*1024}')
                g.append('s_nop 0') if v == 0 else None
            g.append(f'buffer_load_dwordx4 v{VXO+v}, s[16:19], s43 offen offset:{(v&3)*1024} lds')
            out.append(g)
        out[1] = out[0] + out[1]
        return out[1:]
    def w_dma(sp, eoff):
        raise NotImplementedError
    def w_dma_e(e0, e1):
        c0 = (e0 % 5) * 18432; c1 = (e1 % 5) * 18432
        if e0 > 17: e0 = 16
        r0 = e0 * 294912; r1 = (e1 - 1) * 294912
        pre = [f's_mul_i32 s44, s29, {c1 - c0}',
               f's_add_u32 s44, s44, s39',
               f's_mul_i32 s45, s29, {r1 - r0}',
               f's_add_u32 s45, s45, s37']
        if r0: pre.append(f's_add_u32 s45, s45, {r0}')
        out = []
        for t in range(9):
            g = []
            if (t & 3) == 0:
                g.append(f's_add_u32 m0, s44, {c0 + t*1024}')
                g.append('s_nop 0')
            g.append(f'buffer_load_dwordx4 v{VW+t}, s[20:23], s45 offen offset:{(t&3)*1024} lds')
            out.append(g)
        out[0] = pre + out[0]
        return out
    for g in x_dma(0):
        for x in g: a(x)
    for g in w_dma_e(0, 1):
        for x in g: a(x)
    for g in x_dma(1):
        for x in g: a(x)
    for g in w_dma_e(2, 3):
        for x in g: a(x)
    a('s_cmp_eq_u32 s29, 1')
    a('s_cbranch_scc1 L_k1_skip3')
    for g in w_dma_e(4, 4):
        for x in g: a(x)
    a.label('L_k1_skip3')
    a('v_lshrrev_b32 v50, 4, v0')
    a('v_and_b32 v51, 15, v0')
    a('v_lshrrev_b32 v52, 2, v51')
    a('v_lshlrev_b32 v53, 3, v50')
    a('v_add_u32 v52, v52, v53')
    a('v_and_b32 v54, 1, v50')
    a('v_lshlrev_b32 v54, 2, v54')
    a('v_xor_b32 v55, v52, v54')
    a('v_add_u32 v52, 4, v52')
    a('v_xor_b32 v52, v52, v54')
    a('v_and_b32 v53, 3, v51')
    a('v_lshlrev_b32 v53, 3, v53')
    a('v_mul_u32_u24 v55, 288, v55')
    a(f'v_add_u32 v{VA1}, v55, v53')
    a('v_mul_u32_u24 v52, 288, v52')
    a(f'v_add_u32 v{VA2}, v52, v53')
    a('v_lshrrev_b32 v52, 1, v51')
    a('v_and_b32 v52, 7, v52')
    a('v_xor_b32 v52, v52, v50')
    a('v_lshlrev_b32 v52, 4, v52')
    a('v_lshlrev_b32 v53, 7, v51')
    a('v_add_u32 v52, v52, v53')
    a(f'v_add_u32 v{VX0}, s38, v52')
    a(f'v_xor_b32 v{VX1}, 64, v{VX0}')
    a(f'v_lshlrev_b32 v{VH}, 4, v0')
    for k, val in ((VC0, C0), (VC1, C1), (VONE, 1.0)):
        a(f'v_mov_b32 v{k}, {fbits(val)}')
        a(f'v_mov_b32 v{k+1}, {fbits(val)}')

    def acc(ip, gu, mg):
        n = ip * 8 + gu * 4 + mg
        if ip < 6:
            b = ACCV + 4 * n
            return f'v[{b}:{b+3}]'
        b = 4 * (n - 48)
        return f'a[{b}:{b+3}]'
    def abase(s):
        o = []
        for ks in range(2):
            sb = 65536 + ((2*s + ks) % 5) * 18432
            o.append(f'v_add_u32 v{VAC+2*ks}, {sb}, v{VA1}')
            o.append(f'v_add_u32 v{VAC+2*ks+1}, {sb}, v{VA2}')
        return o
    def a_reads(gt):
        s, n = divmod(gt, 18)
        ip, gu = n >> 1, n & 1
        base = AA + 8 * (gt % 3)
        off = gu * 9216 + 32 * ip
        o = []
        for ks in range(2):
            for hf in range(2):
                d = base + 4 * ks + 2 * hf
                o.append(f'ds_read_b64_tr_b16 a[{d}:{d+1}], v{VAC+2*ks+hf} offset:{off}')
        return o
    def x_reads(s):
        o = []
        for mg in range(4):
            for ks in range(2):
                d = AX + 32 * (s % 2) + 8 * mg + 4 * ks
                o.append(f'ds_read_b128 a[{d}:{d+3}], v{VX0+ks} offset:{(s%2)*32768 + mg*2048}')
        return o
    a('s_cmp_eq_u32 s29, 1')
    a('s_cbranch_scc1 L_k1_w1')
    a('s_waitcnt vmcnt(26)')
    a('s_branch L_k1_w2')
    a.label('L_k1_w1')
    a('s_waitcnt vmcnt(17)')
    a.label('L_k1_w2')
    a('s_barrier')
    st()
    for x in abase(0): a(x)
    for x in a_reads(0): a(x)
    for x in x_reads(0): a(x)
    for x in a_reads(1): a(x)
    for s in range(9):
        mf = []; fill = {}
        def add(idx, lst):
            fill.setdefault(idx, []).extend(lst)
        wgroups = []
        for n in range(18):
            gt = s * 18 + n
            ip, gu = n >> 1, n & 1
            ab = AA + 8 * (gt % 3)
            for mg in range(4):
                for ks in range(2):
                    xb = AX + 32 * (s % 2) + 8 * mg + 4 * ks
                    c = acc(ip, gu, mg)
                    src = '0' if (s == 0 and ks == 0) else c
                    mf.append(f'v_mfma_f32_16x16x32_bf16 {c}, a[{ab+4*ks}:{ab+4*ks+3}], a[{xb}:{xb+3}], {src}')
        for n in range(18):
            gt = s * 18 + n
            if n == 17:
                continue
            if n == 16 and s < 8:
                continue
            if n == 16 or n == 17:
                pass
            w = 's_waitcnt lgkmcnt(4)'
            if s == 8 and n >= 16: w = 's_waitcnt lgkmcnt(0)'
            add(8 * n - 1, [w])
        if s == 8:
            add(8 * 17 - 1, ['s_waitcnt lgkmcnt(0)'])
        for n in range(16):
            rd = a_reads(s * 18 + n + 2)
            for k, x in enumerate(rd):
                add(8 * n + k, [x])
        if s < 8:
            vm = 8 if s <= 6 else 0
            add(8 * 16 - 1, [f's_waitcnt vmcnt({vm}) lgkmcnt(0)', 's_barrier'] + abase(s + 1))
            rd0 = a_reads((s + 1) * 18 + 0)
            rx = x_reads(s + 1)
            rd1 = a_reads((s + 1) * 18 + 1)
            for k, x in enumerate(rd0): add(128 + k, [x])
            for k, x in enumerate(rx): add(128 + 4 + k, [x])
            for k, x in enumerate(rd1): add(140 + k, [x])
        if s >= 1 and (s - 1) <= 6:
            g = w_dma_e(2*(s-1) + 6, 2*(s-1) + 5)
            slots = [4, 6, 12, 14, 20, 22, 28, 30, 36]
            for k in range(9): add(slots[k], g[k])
        if s + 2 <= 8:
            g = x_dma(s + 2)
            slots = [44, 52, 60, 68, 76, 84, 92, 100]
            for k in range(8): add(slots[k], g[k])
        emit_stream(a, mf, fill)
        if s in (0, 4): st()
    st()
    a('s_nop 7')
    a('s_lshl_b32 s46, s32, 7')
    a('s_lshl_b32 s47, s33, 4')
    a('s_add_u32 s46, s46, s47')
    a('s_lshl_b32 s47, s28, 2')
    a('s_add_u32 s46, s46, s47')
    a('s_mul_i32 s46, s46, 36864')
    a('s_lshr_b32 s47, s31, 1')
    a('s_mul_i32 s47, s47, 9216')
    a('s_add_u32 s46, s46, s47')
    a('s_mul_i32 s48, s35, 5120')
    a('s_add_u32 s48, s48, s46')
    a('s_add_u32 s49, s46, 4096')
    a('s_lshl_b32 s50, s35, 3')
    a(f'v_add_u32 v{VT}, s50, v{VH}')
    def regs_of(ip, gu, mg, stage):
        n = ip * 8 + gu * 4 + mg
        if ip < 6:
            return ACCV + 4 * n, []
        b = 4 * (n - 48)
        o = [f'v_accvgpr_read_b32 v{stage+r}, a{b+r}' for r in range(4)]
        return stage, o
    ob = 0
    def gelu_block(tiles, O):
        prs = []
        for ti, (G, U) in enumerate(tiles):
            prs.append((G, U, T0 + 4 * ti, O + 2 * ti))
            prs.append((G + 2, U + 2, T0 + 4 * ti + 2, O + 2 * ti + 1))
        def p(x): return f'v[{x}:{x+1}]'
        for G, U, T, o in prs: a(f'v_pk_mul_f32 {p(T)}, {p(G)}, {p(G)}')
        for G, U, T, o in prs: a(f'v_pk_fma_f32 {p(T)}, {p(T)}, {p(VC1)}, {p(VC0)}')
        for G, U, T, o in prs: a(f'v_pk_mul_f32 {p(T)}, {p(G)}, {p(T)}')
        for G, U, T, o in prs: a(f'v_pk_mul_f32 {p(U)}, {p(G)}, {p(U)}')
        for G, U, T, o in prs:
            a(f'v_exp_f32 v{T}, v{T}'); a(f'v_exp_f32 v{T+1}, v{T+1}')
        for G, U, T, o in prs: a(f'v_pk_add_f32 {p(T)}, {p(T)}, {p(VONE)}')
        for G, U, T, o in prs:
            a(f'v_rcp_f32 v{T}, v{T}'); a(f'v_rcp_f32 v{T+1}, v{T+1}')
        for G, U, T, o in prs: a(f'v_pk_mul_f32 {p(U)}, {p(U)}, {p(T)}')
        for G, U, T, o in prs: a(f'v_cvt_pk_bf16_f32 v{o}, v{U}, v{U+1}')
    STG = ACCV
    for pp in range(4):
        for mg in range(4):
            tiles = []
            for k, ip in enumerate((2 * pp, 2 * pp + 1)):
                G, o1 = regs_of(ip, 0, mg, STG + 8 * k + 16 * (mg & 1))
                U, o2 = regs_of(ip, 1, mg, STG + 8 * k + 4 + 16 * (mg & 1))
                for x in o1 + o2: a(x)
                tiles.append((G, U))
            O = 42 + 4 * (ob & 1); ob += 1
            gelu_block(tiles, O)
            a(f's_add_u32 s51, s48, {mg*36864 + pp*1024}')
            a(f'buffer_store_dwordx4 v[{O}:{O+3}], v{VH}, s[24:27], s51 offen')
    for mg in range(4):
        G, o1 = regs_of(8, 0, mg, STG + 16 * (mg & 1))
        U, o2 = regs_of(8, 1, mg, STG + 4 + 16 * (mg & 1))
        for x in o1 + o2: a(x)
        O = 42 + 4 * (ob & 1); ob += 1
        gelu_block([(G, U)], O)
        a(f's_add_u32 s51, s49, {mg*36864}')
        a(f'buffer_store_dwordx2 v[{O}:{O+1}], v{VT}, s[24:27], s51 offen')
    st()
    a('s_waitcnt vmcnt(0)')
    st()
    st.flush(ST_OFF)
    a.label('L_end_k1')
    a('s_endpgm')
    return a.text()

def gen_k2(stamps=False):
    a = Asm(); a.sfx = '_k2'
    common_prologue(a)
    st = Stamper(a, stamps)
    st()
    srd(a, 16, 10, 5308416)
    srd(a, 24, 14, 1 << 28)
    VW = 1; VA = 18; VH = 26; ACC = 64
    AH = 0
    AA = 128
    for t in range(9):
        r = VW + t
        a(f'v_add_u32 v27, {64*t}, v0')
        a('v_mul_u32_u24 v50, 3641, v27')
        a('v_lshrrev_b32 v50, 16, v50')
        a('v_mul_u32_u24 v51, 18, v50')
        a('v_sub_u32 v51, v27, v51')
        a('v_mul_u32_u24 v50, 1152, v50')
        a('v_lshlrev_b32 v51, 4, v51')
        a(f'v_add_u32 v{r}, v50, v51')
        if t & 3:
            a(f'v_subrev_u32 v{r}, {1024*(t&3)}, v{r}')
    a(f'v_lshlrev_b32 v{VH}, 4, v0')
    a('s_lshr_b32 s40, s31, 2')
    a('s_and_b32 s41, s31, 3')
    a('s_mul_i32 s36, s32, 1327104')
    a('s_mul_i32 s42, s28, 36864')
    a('s_add_u32 s36, s36, s42')
    a('s_mul_i32 s42, s41, 288')
    a('s_add_u32 s36, s36, s42')
    a('s_mul_i32 s38, s28, 9216')
    a('s_lshl_b32 s46, s32, 7')
    a('s_lshl_b32 s47, s33, 4')
    a('s_add_u32 s46, s46, s47')
    a('s_lshl_b32 s47, s40, 3')
    a('s_add_u32 s46, s46, s47')
    a('s_lshl_b32 s47, s28, 1')
    a('s_add_u32 s46, s46, s47')
    a('s_mul_i32 s46, s46, 36864')
    def issue(r):
        out = []
        pre = [f's_add_u32 s45, s36, {r*4*36864}']
        for t in range(9):
            g = []
            if (t & 3) == 0:
                g.append(f's_add_u32 m0, s38, {((4*r) % 16) * 9216 + t*1024}')
                g.append('s_nop 0')
            g.append(f'buffer_load_dwordx4 v{VW+t}, s[16:19], s45 offen offset:{(t&3)*1024} lds')
            out.append(g)
        out[0] = pre + out[0]
        for bb in range(4):
            b = 4 * r + bb
            for mg in range(2):
                d = AH + 8 * (b % 16) + 4 * mg
                out.append([f's_add_u32 s47, s46, {mg*36864 + b*1024}',
                            f'buffer_load_dwordx4 a[{d}:{d+3}], v{VH}, s[24:27], s47 offen'])
        return out
    for r in range(4):
        for g in issue(r):
            for x in g: a(x)
    a('v_lshrrev_b32 v50, 4, v0')
    a('v_and_b32 v51, 15, v0')
    a('v_lshrrev_b32 v52, 2, v51')
    a('v_lshlrev_b32 v53, 2, v50')
    a('v_add_u32 v52, v52, v53')
    a('v_mul_u32_u24 v52, 288, v52')
    a('v_and_b32 v53, 3, v51')
    a('v_lshlrev_b32 v53, 3, v53')
    a(f'v_add_u32 v{VA}, v52, v53')
    a(f'v_add_u32 v{VA+1}, 65536, v{VA}')
    a(f'v_add_u32 v{VA+2}, {2*65536}, v{VA}')
    def a_reads(gt):
        ss, n = divmod(gt, 9)
        base = AA + 8 * (gt % 3)
        o = []
        for ks in range(2):
            b = 2 * ss + ks
            for hf in range(2):
                off = (b % 16) * 9216 + hf * 16 * 288 + 32 * n
                hi, off = divmod(off, 65536)
                d = base + 4 * ks + 2 * hf
                o.append(f'ds_read_b64_tr_b16 a[{d}:{d+1}], v{VA+hi} offset:{off}')
        return o
    def acc(n, mg):
        b = ACC + 4 * (n * 2 + mg)
        return f'v[{b}:{b+3}]'
    a('s_waitcnt vmcnt(51)')
    a('s_barrier')
    st()
    for x in a_reads(0): a(x)
    for x in a_reads(1): a(x)
    for r in range(9):
        mf = []; fill = {}
        def add(idx, lst): fill.setdefault(idx, []).extend(lst)
        for tl in range(18):
            gt = r * 18 + tl
            ss, n = divmod(gt, 9)
            ab = AA + 8 * (gt % 3)
            for mg in range(2):
                for ks in range(2):
                    b = 2 * ss + ks
                    hb = AH + 8 * (b % 16) + 4 * mg
                    c = acc(n, mg)
                    src = '0' if (ss == 0 and ks == 0) else c
                    mf.append(f'v_mfma_f32_16x16x32_bf16 {c}, a[{ab+4*ks}:{ab+4*ks+3}], a[{hb}:{hb+3}], {src}')
        for tl in range(18):
            if r < 8 and tl >= 16: continue
            w = 's_waitcnt lgkmcnt(4)'
            if r == 8 and tl >= 16: w = 's_waitcnt lgkmcnt(0)'
            add(4 * tl - 1, [w])
        for tl in range(16):
            for k, x in enumerate(a_reads(r * 18 + tl + 2)): add(4 * tl + k, [x])
        if r < 8:
            newer = sum(17 for rr in (r + 2, r + 3) if rr <= 8)
            add(4 * 16 - 1, [f's_waitcnt vmcnt({newer}) lgkmcnt(0)', 's_barrier'])
            for k, x in enumerate(a_reads((r + 1) * 18)): add(64 + k, [x])
            for k, x in enumerate(a_reads((r + 1) * 18 + 1)): add(68 + k, [x])
        if r >= 1 and r + 3 <= 8:
            g = issue(r + 3)
            slots = [1, 5, 9, 13, 17, 21, 25, 29, 33, 37, 41, 45, 49, 53, 57, 61, 62]
            for k in range(17): add(slots[k], g[k])
        emit_stream(a, mf, fill)
    st()
    a('s_nop 7')
    a('s_lshl_b32 s46, s32, 3')
    a('s_add_u32 s46, s46, s33')
    a('s_lshl_b32 s46, s46, 3')
    a('s_add_u32 s46, s46, s31')
    a('s_lshl_b32 s46, s46, 2')
    a('s_add_u32 s46, s46, s28')
    a('s_mul_i32 s46, s46, 18432')
    a(f's_add_u32 s46, s46, {P_OFF}')
    for mg in range(2):
        for n in range(9):
            b = ACC + 4 * (n * 2 + mg)
            a(f's_add_u32 s47, s46, {(mg*9+n)*1024}')
            a(f'buffer_store_dwordx4 v[{b}:{b+3}], v{VH}, s[24:27], s47 offen')
    a('s_waitcnt vmcnt(0)')
    st()
    st.flush(ST_OFF + 0x100000)
    a.label('L_end_k2')
    a('s_endpgm')
    return a.text()

def gen_k3():
    a = Asm(); a.sfx = '_k3'
    common_prologue(a)
    srd(a, 24, 14, 1 << 28)
    srd(a, 16, 12, 2359296)
    a('v_lshlrev_b32 v26, 4, v0')
    a('s_lshr_b32 s40, s32, 1')
    a('s_and_b32 s41, s32, 1')
    a('s_mul_i32 s42, s40, 9')
    a('s_mul_i32 s43, s41, 5')
    a('s_add_u32 s42, s42, s43')
    a('s_lshl_b32 s46, s33, 3')
    a('s_add_u32 s46, s46, s31')
    a('s_lshl_b32 s46, s46, 2')
    a('s_add_u32 s46, s46, s28')
    a('s_mul_i32 s46, s46, 18432')
    a(f's_add_u32 s46, s46, {P_OFF}')
    a('s_lshl_b32 s43, s42, 10')
    a('s_add_u32 s46, s46, s43')
    QS = 8 * 8 * 4 * 18432
    for k in range(5):
        for qq in range(4):
            d = 32 + 16 * k + 4 * qq
            a(f's_add_u32 s47, s46, {qq*QS + k*1024}')
            a(f'buffer_load_dwordx4 v[{d}:{d+3}], v26, s[24:27], s47 offen')
    a('s_lshr_b32 s48, s31, 2')
    a('s_and_b32 s49, s31, 3')
    a('s_lshl_b32 s50, s33, 8')
    a('s_lshl_b32 s51, s48, 7')
    a('s_add_u32 s50, s50, s51')
    a('s_lshl_b32 s51, s28, 5')
    a('s_add_u32 s50, s50, s51')
    a('s_lshl_b32 s51, s40, 4')
    a('s_add_u32 s50, s50, s51')
    a('s_mul_i32 s50, s50, 1152')
    a('s_mul_i32 s51, s49, 288')
    a('s_add_u32 s50, s50, s51')
    a('s_mul_i32 s51, s41, 160')
    a('s_add_u32 s50, s50, s51')
    a('v_and_b32 v2, 15, v0')
    a('v_mul_u32_u24 v2, 1152, v2')
    a('v_lshrrev_b32 v3, 4, v0')
    a('v_lshlrev_b32 v3, 3, v3')
    a('v_add_u32 v2, v2, v3')
    a('s_waitcnt vmcnt(0)')
    for k in range(5):
        d = 32 + 16 * k
        for r in range(4):
            a(f'v_add_f32 v{d+r}, v{d+r}, v{d+4+r}')
            a(f'v_add_f32 v{d+8+r}, v{d+8+r}, v{d+12+r}')
        for r in range(4):
            a(f'v_add_f32 v{d+r}, v{d+r}, v{d+8+r}')
        a(f'v_cvt_pk_bf16_f32 v{d}, v{d}, v{d+1}')
        a(f'v_cvt_pk_bf16_f32 v{d+1}, v{d+2}, v{d+3}')
        if k == 4:
            a('s_cmp_eq_u32 s41, 1')
            a('s_cbranch_scc1 L_end_k3')
        a(f'buffer_store_dwordx2 v[{d}:{d+1}], v2, s[16:19], s50 offen offset:{32*k}')
    a.label('L_end_k3')
    a('s_endpgm')
    return a.text()

if __name__ == '__main__':
    stamps = '--stamps' in sys.argv
    out = [x for x in sys.argv[1:] if not x.startswith('--')][0]
    ks = [('geglu_k1_kernel', gen_k1(stamps), 256, 256, 157696, 512, 256, 102),
          ('geglu_k2_kernel', gen_k2(stamps), 256, 256, 147456, 512, 256, 102),
          ('geglu_k3_kernel', gen_k3(), 256, 256, 0, 128, 128, 102)]
    open(out, 'w').write(multi_file(ks))
```
